```python
import torch

def _softmax(x, axis=-1):
    return torch.softmax(x, dim=axis)
def _gelu(x):
    return torch.nn.functional.gelu(x, approximate="tanh")
def _silu(x):
    return torch.nn.functional.silu(x)
def _sigmoid(x):
    return torch.sigmoid(x)
def _layernorm(x, axis=-1, eps=1e-5):
    m = x.mean(dim=axis, keepdim=True)
    v = x.var(dim=axis, keepdim=True, unbiased=False)
    return (x - m) / torch.sqrt(v + eps)
def _scatter_add(tgt, idx, src, axis=0):
    return tgt.clone().index_add_(axis, idx, src)
def _segment_sum(src, seg, n):
    out = torch.zeros((n,) + src.shape[1:], dtype=src.dtype)
    return out.index_add_(0, seg, src)
def _pad(x, pw):
    flat = tuple(v for pair in reversed(pw) for v in pair)
    return torch.nn.functional.pad(x, flat)

kernel_name = 'gather_scatter__edge_featured_mpnn_mpnn__graph'

def setup_inputs():

    _w = (lambda a: (lambda t: t.to(torch.bfloat16) if t.is_floating_point() else t)(torch.as_tensor(a)))
    N, deg, D, De = 25000, 16, 128, max(16, 1)
    E = N * deg
    H = 2 * D
    return {
        "x": _w((lambda *s: torch.randn(*s, dtype=torch.bfloat16) * 0.05)(N, D)),
        "e_attr": _w((lambda *s: torch.randn(*s, dtype=torch.bfloat16) * 0.8)(E, De)),
        "src": _w((lambda lo, hi, *s: torch.randint(lo, hi, s))(0, N, E).to(torch.int64)),
        "dst": _w((lambda lo, hi, *s: torch.randint(lo, hi, s))(0, N, E).to(torch.int64)),
        "w1": _w((lambda *s: torch.randn(*s, dtype=torch.bfloat16) * 0.8)(2 * D + De, H) * (1.0 / (2 * D + De) ** 0.5)),
        "b1": _w((lambda *s: torch.randn(*s, dtype=torch.bfloat16) * 0.4)(H) * 0.01),
        "w2": _w((lambda *s: torch.randn(*s, dtype=torch.bfloat16) * 0.05)(H, D) * (1.0 / H ** 0.5)),
        "b2": _w((lambda *s: torch.randn(*s, dtype=torch.bfloat16) * 0.05)(D) * 0.01),
    }

def reference(x, e_attr, src, dst, w1, b1, w2, b2):
    N, D = x.shape
    h_src = x[src]
    h_dst = x[dst]
    m_in = torch.concatenate([h_src, h_dst, e_attr], axis=-1)
    h = _silu(m_in @ w1 + b1)
    msg = h @ w2 + b2
    return _segment_sum(msg, dst, N)
```

```python
import sys
sys.path.insert(0, "bench")
from runner import *
from runner import _check, _hip
HEAD = '.amdgcn_target "amdgcn-amd-amdhsa--gfx950"\n.text\n'
def kernel(name, same, nld, twice):
    body = ""
    def grp(tag, extra):
        b = ""
        for i in range(nld):
            b += f"    s_add_u32 m0, s30, {i*1024}\n    s_add_u32 s31, s29, {i*1024 + extra}\n    buffer_load_dwordx4 v4, s[12:15], s31 offen lds\n"
        return b
    return f""".globl {name}
.p2align 8
.type {name},@function
{name}:
    s_memrealtime s[40:41]
    s_load_dwordx2 s[4:5], s[0:1], 0
    s_load_dwordx2 s[8:9], s[0:1], 8
    v_lshrrev_b32 v1, 6, v0
    v_and_b32 v2, 63, v0
    v_lshlrev_b32 v4, 4, v2
    v_readfirstlane_b32 s20, v1
    s_waitcnt lgkmcnt(0)
    s_memrealtime s[42:43]
    s_mov_b32 s12, s4
    s_and_b32 s13, s5, 0xffff
    s_mov_b32 s14, {64<<20}
    s_mov_b32 s15, 0x00020000
    s_mul_i32 s30, s20, {nld*1024}
    s_mul_i32 s28, s2, {0 if same else 8*nld*1024}
    s_add_u32 s29, s28, s30
{grp(0, 0)}
    s_waitcnt vmcnt(0)
    s_memrealtime s[44:45]
{grp(1, 32<<20) if twice else ""}
    s_waitcnt vmcnt(0)
    s_memrealtime s[46:47]
    s_waitcnt lgkmcnt(0)
    s_sub_u32 s42, s42, s40
    s_sub_u32 s44, s44, s40
    s_sub_u32 s46, s46, s40
    v_mov_b32 v8, s42
    v_mov_b32 v9, s44
    v_mov_b32 v10, s46
    v_mov_b32 v11, s40
    s_lshl_b32 s3, s2, 3
    s_add_u32 s3, s3, s20
    s_lshl_b32 s3, s3, 4
    v_mov_b32 v3, s3
    s_mov_b32 s16, s8
    s_and_b32 s17, s9, 0xffff
    s_mov_b32 s18, {256*8*16}
    s_mov_b32 s19, 0x00020000
    s_mov_b64 exec, 1
    buffer_store_dwordx4 v[8:11], v3, s[16:19], 0 offen
    s_waitcnt vmcnt(0)
    s_endpgm
    .fill 64, 4, 0xbf800000
.section .rodata,"a"
.p2align 6
.amdhsa_kernel {name}
  .amdhsa_next_free_vgpr 64
  .amdhsa_next_free_sgpr 96
  .amdhsa_accum_offset 64
  .amdhsa_group_segment_fixed_size 0
  .amdhsa_kernarg_size 88
  .amdhsa_user_sgpr_count 2
  .amdhsa_user_sgpr_kernarg_segment_ptr 1
  .amdhsa_system_sgpr_workgroup_id_x 1
.end_amdhsa_kernel
.text
"""
cfg = [("same8", 1, 8, 1), ("dist8", 0, 8, 1), ("same2", 1, 2, 1), ("dist2", 0, 2, 1), ("dist1", 0, 1, 1)]
asm = HEAD
for c in cfg: asm += kernel("c_" + c[0], *c[1:])
co = assemble(asm, ["c_" + c[0] for c in cfg], "mb_cold_gen")
if len(sys.argv) > 1: print("assembled"); sys.exit(0)
mod = Module(co); buf = DeviceBuffer(64 << 20); out = DeviceBuffer(256*8*16); big = DeviceBuffer(512 << 20)
for c in cfg:
    for cold in (0, 1):
        rows = []
        for r in range(4):
            if cold:
                _check(_hip.hipMemset(big._ptr, r, 512 << 20)); sync()
            mod.launch("c_" + c[0], (256,1,1), (512,1,1), [buf.ptr, out.ptr], lds=140000); sync()
            o = out.to_numpy(np.uint32, (2048, 4)).astype(np.int64)
            rows.append((np.median(o[:,0])*10, np.median(o[:,1])*10, o[:,1].max()*10, np.median(o[:,2]-o[:,1])*10, (o[:,2]-o[:,1]).max()*10, (o[:,3].max()-o[:,3].min())*10))
        print(f"{c[0]:6s} cold={cold}: " + " | ".join(f"karg {a:.0f} first med {b:.0f} max {cc:.0f} second med {d:.0f} max {e:.0f} startskew {f:.0f}" for a,b,cc,d,e,f in rows[-2:]), flush=True)
```
